```python
import torch

def _softmax(x, axis=-1):
    return torch.softmax(x, dim=axis)
def _gelu(x):
    return torch.nn.functional.gelu(x, approximate="tanh")
def _silu(x):
    return torch.nn.functional.silu(x)
def _sigmoid(x):
    return torch.sigmoid(x)
def _layernorm(x, axis=-1, eps=1e-5):
    m = x.mean(dim=axis, keepdim=True)
    v = x.var(dim=axis, keepdim=True, unbiased=False)
    return (x - m) / torch.sqrt(v + eps)
def _scatter_add(tgt, idx, src, axis=0):
    return tgt.clone().index_add_(axis, idx, src)
def _segment_sum(src, seg, n):
    out = torch.zeros((n,) + src.shape[1:], dtype=src.dtype)
    return out.index_add_(0, seg, src)
def _pad(x, pw):
    flat = tuple(v for pair in reversed(pw) for v in pair)
    return torch.nn.functional.pad(x, flat)

kernel_name = 'interleave_layers__softmax_full_mha__dense_activation_mish__prompt'

def setup_inputs():

    _w = (lambda a: (lambda t: t.to(torch.bfloat16) if t.is_floating_point() else t)(torch.as_tensor(a)))
    def _A_setup():
        B, S, D = 1, 2048, 512
        return {
            "x": _w((lambda *s: torch.randn(*s, dtype=torch.bfloat16) * 0.05)(B, S, D)),
            "wqkv": _w((lambda *s: torch.randn(*s, dtype=torch.bfloat16) * 0.05)(D, 3 * D)),
            "wo": _w((lambda *s: torch.randn(*s, dtype=torch.bfloat16) * 0.05)(D, D)),
        }
    _A_in = _A_setup()

    def _B_setup():
        B, S, D, F = 1, 2048, 512, 1376
        return {
            "x": _w((lambda *s: torch.randn(*s, dtype=torch.bfloat16) * 0.05)(B, S, D)),
            "w1": _w((lambda *s: torch.randn(*s, dtype=torch.bfloat16) * 1.6)(D, F) * (D ** -0.5)),
            "b1": _w((lambda *s: torch.randn(*s, dtype=torch.bfloat16) * 0.2)(F)),
            "w2": _w((lambda *s: torch.randn(*s, dtype=torch.bfloat16) * 0.2)(F, D) * (F ** -0.5)),
        }
    _B_in = _B_setup()

    return {
        "A_x": _A_in["x"],
        "A_wqkv": _A_in["wqkv"],
        "A_wo": _A_in["wo"],
        "B_x": _B_in["x"],
        "B_w1": _B_in["w1"],
        "B_b1": _B_in["b1"],
        "B_w2": _B_in["w2"],
    }

def reference(A_x, A_wqkv, A_wo, B_x, B_w1, B_b1, B_w2):
    def _A_ref(x, wqkv, wo):
        B, S, D = x.shape
        H = 32; Dh = D // H
        qkv = (lambda x, *d: x.permute(*d))((x @ wqkv).reshape(B, S, 3, H, Dh), 2, 0, 3, 1, 4)
        q, k, v = qkv[0], qkv[1], qkv[2]
        scale = Dh ** -0.5
        scores = torch.einsum("bhqd,bhkd->bhqk", q, k) * scale
        p = _softmax(scores, axis=-1)
        o = torch.einsum("bhqk,bhkd->bhqd", p, v)
        return (lambda x, *d: x.permute(*d))(o, 0, 2, 1, 3).reshape(B, S, D) @ wo

    def _B_ref(x, w1, b1, w2):
        h = torch.einsum("bsd,df->bsf", x, w1) + b1
        sp = torch.log1p(torch.exp(-torch.abs(h))) + torch.where(h > 0, h, torch.zeros_like(h))
        act = h * torch.tanh(sp)
        return torch.einsum("bsf,fd->bsd", act, w2)

    x = A_x
    x = x + _A_ref(_layernorm(x, axis=-1), A_wqkv, A_wo)
    x = x + _B_ref(_layernorm(x, axis=-1), B_w1, B_b1, B_w2)
    x = x + _A_ref(_layernorm(x, axis=-1), A_wqkv, A_wo)
    x = x + _B_ref(_layernorm(x, axis=-1), B_w1, B_b1, B_w2)
    return x
```

```python
class Asm:
    def __init__(self):
        self.lines = []
        self.uid = 0
    def __call__(self, s):
        for l in s.split("\n"):
            l = l.strip()
            if l:
                self.lines.append("    " + l)
    def label(self, l):
        self.lines.append(l + ":")
    def raw(self, s):
        self.lines.append(s)
    def comment(self, s):
        self.lines.append("    ; " + s)
    def newlabel(self, p="L"):
        self.uid += 1
        return f"{p}_{self.uid}"
    def text(self):
        return "\n".join(self.lines) + "\n"

class Regs:
    def __init__(self, start, limit, pfx):
        self.n = start; self.limit = limit; self.pfx = pfx; self.hi = start
    def alloc(self, cnt=1, align=1):
        self.n = (self.n + align - 1) // align * align
        r = self.n
        self.n += cnt
        self.hi = max(self.hi, self.n)
        assert self.n <= self.limit, f"out of {self.pfx} regs"
        return r

def vr(b, n=1):
    return f"v{b}" if n == 1 else f"v[{b}:{b+n-1}]"
def sr(b, n=1):
    return f"s{b}" if n == 1 else f"s[{b}:{b+n-1}]"

class VmTracker:
    def __init__(self):
        self.ops = []
    def issue(self, tag):
        self.ops.append(tag)
    def need(self, pred):
        last = -1
        for i, t in enumerate(self.ops):
            if pred(t):
                last = i
        n = len(self.ops) - 1 - last
        assert n <= 63, n
        return n

def kernel_header(a, name):
    a.raw(f".globl {name}")
    a.raw(".p2align 8")
    a.raw(f".type {name},@function")
    a.label(name)

def kernel_desc(name, vgpr, sgpr, accum=None):
    if accum is None:
        accum = (vgpr + 3) // 4 * 4
    return f""".p2align 6
.amdhsa_kernel {name}
  .amdhsa_next_free_vgpr {vgpr}
  .amdhsa_next_free_sgpr {sgpr}
  .amdhsa_accum_offset {accum}
  .amdhsa_group_segment_fixed_size 0
  .amdhsa_kernarg_size 80
  .amdhsa_user_sgpr_count 2
  .amdhsa_user_sgpr_kernarg_segment_ptr 1
  .amdhsa_system_sgpr_workgroup_id_x 1
.end_amdhsa_kernel
"""
```

```python
import struct, math, sys
from asmlib import *

NAME = "interleave_layers__softmax_full_mha__dense_activation_mish__prompt"
XF = 0; QF = 2 << 20; KF = 4 << 20; VF = 6 << 20; OF = 8 << 20; AF = 10 << 20
ST = 16 << 20
CSQ = ST + (512 << 10); CS1 = CSQ + 8192; B1F = CSQ + 16384
WSB = 0x10000000
LOG2E = 1.4426950408889634
LN2 = 0.6931471805599453
def f2u(x): return "0x%08x" % struct.unpack("<I", struct.pack("<f", x))[0]
MFMA = "v_mfma_f32_32x32x16_bf16"

def srd(a, s, nbytes):
    a(f"s_mov_b32 s{s+2}, {hex(nbytes)}")
    a(f"s_mov_b32 s{s+3}, 0x00020000")

def gen_prep(a):
    name = "prep_kernel"
    kernel_header(a, name)
    a("s_cmp_ge_u32 s2, 302")
    a("s_cbranch_scc1 prep_end")
    a("s_load_dwordx2 s[12:13], s[0:1], 72")
    a("s_load_dwordx4 s[16:19], s[0:1], 0")
    a("s_load_dwordx4 s[20:23], s[0:1], 32")
    srd(a, 12, WSB)
    a("s_mov_b32 s11, 0x00020000")
    a("s_cmp_ge_u32 s2, 256")
    a("s_cbranch_scc1 prep_cs")
    a("v_and_b32 v1, 63, v0")
    a("v_lshrrev_b32 v2, 6, v0")
    a("v_and_b32 v3, 31, v0")
    a("v_bfe_u32 v4, v0, 5, 1")
    a("s_lshr_b32 s3, s2, 2")
    a("s_and_b32 s4, s2, 3")
    a("s_lshl_b32 s4, s4, 2")
    a("v_add_u32 v2, s4, v2")
    a("s_lshl_b32 s5, s3, 5")
    a("v_add_u32 v3, s5, v3")
    a("v_lshlrev_b32 v5, 10, v3")
    a("v_lshl_add_u32 v5, v2, 6, v5")
    a("v_lshl_add_u32 v5, v4, 3, v5")
    a("s_waitcnt lgkmcnt(0)")
    a("s_mov_b32 s8, s16")
    a("s_mov_b32 s9, s17")
    a("s_mov_b32 s10, 0x200000")
    for i in range(4):
        a(f"buffer_load_dwordx2 v[{8+2*i}:{9+2*i}], v5, s[8:11], 0 offen offset:{16*i}")
    a("s_lshl_b32 s6, s3, 15")
    a("v_lshlrev_b32 v6, 4, v1")
    a("v_lshl_add_u32 v6, v2, 11, v6")
    a("v_add_u32 v6, s6, v6")
    a("v_lshlrev_b32 v7, 7, v3")
    a("v_lshl_add_u32 v7, v2, 3, v7")
    a("v_lshl_add_u32 v7, v4, 2, v7")
    a(f"v_add_u32 v7, {hex(ST)}, v7")
    a("v_mov_b32 v16, 0x3f803f80")
    a("v_mov_b32 v17, 0")
    a("v_mov_b32 v18, 0")
    a("s_waitcnt vmcnt(0)")
    a("buffer_store_dwordx4 v[8:11], v6, s[12:15], 0 offen")
    a("buffer_store_dwordx4 v[12:15], v6, s[12:15], 0 offen offset:1024")
    for i in range(8):
        a(f"v_dot2_f32_bf16 v17, v{8+i}, v16, v17")
        a(f"v_dot2_f32_bf16 v18, v{8+i}, v{8+i}, v18")
    a("s_nop 3")
    a("v_permlane32_swap_b32 v17, v18")
    a("s_nop 1")
    a("v_add_f32 v17, v17, v18")
    a("buffer_store_dword v17, v7, s[12:15], 0 offen")
    a("s_endpgm")
    a.label("prep_cs")
    a("s_sub_u32 s3, s2, 256")
    a("s_waitcnt lgkmcnt(0)")
    a("s_cmp_lt_u32 s3, 24")
    a("s_cselect_b32 s8, s18, s20")
    a("s_cselect_b32 s9, s19, s21")
    a(f"s_mov_b32 s10, {512*2752}")
    a(f"s_cmov_b32 s10, {512*3072}")
    a("s_mov_b32 s4, 2752")
    a("s_cmov_b32 s4, 3072")
    a("s_cselect_b32 s5, 0, 24")
    a(f"s_mov_b32 s6, {hex(CS1)}")
    a(f"s_cmov_b32 s6, {hex(CSQ)}")
    a("s_sub_u32 s3, s3, s5")
    a("v_and_b32 v1, 7, v0")
    a("v_lshrrev_b32 v2, 3, v0")
    a("v_mul_lo_u32 v3, v2, s4")
    a("v_lshl_add_u32 v3, v1, 4, v3")
    a("s_lshl_b32 s7, s3, 7")
    a("s_lshl_b32 s24, s4, 5")
    for i in range(16):
        a(f"buffer_load_dwordx4 v[{16+4*i}:{19+4*i}], v3, s[8:11], s7 offen")
        if i < 15:
            a("s_add_u32 s7, s7, s24")
    a("s_mov_b32 s28, s22")
    a("s_mov_b32 s29, s23")
    srd(a, 28, 1376 * 2)
    a("s_lshl_b32 s25, s3, 6")
    a("v_add_u32 v4, s25, v0")
    a("v_lshlrev_b32 v5, 1, v4")
    a("buffer_load_ushort v6, v5, s[28:31], 0 offen")
    a("v_mov_b32 v80, 0x00003f80")
    a("v_mov_b32 v81, 0x3f800000")
    for j in range(8):
        a(f"v_mov_b32 v{8+j}, 0")
    for i in range(16):
        a(f"s_waitcnt vmcnt({16-i})")
        for d in range(4):
            a(f"v_dot2_f32_bf16 v{8+2*d}, v{16+4*i+d}, v80, v{8+2*d}")
            a(f"v_dot2_f32_bf16 v{9+2*d}, v{16+4*i+d}, v81, v{9+2*d}")
    a("v_lshlrev_b32 v7, 5, v0")
    a("s_nop 2")
    a("ds_write_b128 v7, v[8:11]")
    a("ds_write_b128 v7, v[12:15] offset:16")
    a("s_waitcnt lgkmcnt(0)")
    a("s_barrier")
    a("v_cmp_gt_u32 vcc, 64, v0")
    a("s_and_saveexec_b64 s[26:27], vcc")
    a("s_cbranch_execz prep_end")
    a("v_lshlrev_b32 v7, 2, v0")
    for half in range(4):
        for i in range(8):
            a(f"ds_read_b32 v{16+8*half+i}, v7 offset:{(8*half+i)*256}")
    a("s_waitcnt lgkmcnt(0)")
    n = 32
    while n > 1:
        n //= 2
        for i in range(n):
            a(f"v_add_f32 v{16+i}, v{16+i}, v{16+n+i}")
    a("v_lshlrev_b32 v4, 2, v4")
    a("v_add_u32 v5, s6, v4")
    a("buffer_store_dword v16, v5, s[12:15], 0 offen")
    a("s_cmp_eq_u32 s5, 0")
    a("s_cbranch_scc1 prep_end")
    a("s_waitcnt vmcnt(0)")
    a("v_lshlrev_b32 v6, 16, v6")
    a(f"v_mul_f32 v6, {f2u(LOG2E)}, v6")
    a(f"v_add_u32 v5, {hex(B1F)}, v4")
    a("buffer_store_dword v6, v5, s[12:15], 0 offen")
    a.label("prep_end")
    a("s_endpgm")
    return (name, 88, 40, 302, 256, 8192)

def lane_decode(a, v):
    a(f"v_and_b32 v{v['lane']}, 63, v0")
    a(f"v_lshrrev_b32 v{v['t0']}, 6, v0")
    a(f"v_and_b32 v{v['tok']}, 31, v0")
    a(f"v_readfirstlane_b32 s18, v{v['t0']}")
    a(f"v_bfe_u32 v{v['h']}, v0, 5, 1")

def row_stats(a, st, out_negm, out_rstd, t0, t1):
    for n in (4, 2, 1):
        for i in range(n):
            a(f"v_pk_add_f32 v[{st+2*i}:{st+2*i+1}], v[{st+2*i}:{st+2*i+1}], v[{st+2*(i+n)}:{st+2*(i+n)+1}]")
    a(f"v_mov_b32 v{t0}, v{st}")
    a(f"v_mov_b32 v{t1}, v{st+1}")
    a("s_nop 1")
    a(f"v_permlane32_swap_b32 v{t0}, v{st}")
    a(f"v_permlane32_swap_b32 v{t1}, v{st+1}")
    a("s_nop 1")
    a(f"v_add_f32 v{t0}, v{t0}, v{st}")
    a(f"v_add_f32 v{t1}, v{t1}, v{st+1}")
    a(f"v_mul_f32 v{out_negm}, {f2u(-1.0/512)}, v{t0}")
    a(f"v_mul_f32 v{t1}, {f2u(1.0/512)}, v{t1}")
    a(f"v_fma_f32 v{t1}, -v{out_negm}, v{out_negm}, v{t1}")
    a(f"v_max_f32 v{t1}, 0, v{t1}")
    a(f"v_add_f32 v{t1}, {f2u(1e-5)}, v{t1}")
    a(f"v_rsq_f32 v{out_rstd}, v{t1}")
    a("s_nop 0")

def gen_gemmA(a, name, mode, P=4):
    qkv = mode == "qkv"
    RS = 3072 if qkv else 2752
    KA = 8 if qkv else 32
    NCT = 16 if qkv else 15
    CSB = 98304
    R = Regs(1, 256, "v")
    v = {k: R.alloc() for k in ("lane", "tok", "h", "t0", "t1", "t2", "vx", "w0", "w1", "w2", "ra", "rb", "vc", "vst", "vpk", "vpv")}
    negm = R.alloc(2, 2); rstd = R.alloc(2, 2); sc = R.alloc(2, 2)
    acc = R.alloc(48, 4)
    xf = R.alloc(128, 4)
    wf = R.alloc(36, 4)
    st = R.alloc(16, 4)
    kernel_header(a, name)
    end = name + "_end"
    a("s_cmp_ge_u32 s2, 256")
    a(f"s_cbranch_scc1 {end}")
    a(f"s_load_dwordx2 s[8:9], s[0:1], {KA}")
    a("s_load_dwordx2 s[12:13], s[0:1], 72")
    a("s_and_b32 s3, s2, 7")
    a("s_lshr_b32 s4, s2, 3")
    a("s_lshr_b32 s16, s3, 1")
    a("s_lshl_b32 s16, s16, 2")
    a("s_and_b32 s5, s4, 3")
    a("s_add_u32 s16, s16, s5")
    a("s_and_b32 s17, s3, 1")
    a("s_lshl_b32 s17, s17, 3")
    a("s_lshr_b32 s5, s4, 2")
    a("s_add_u32 s17, s17, s5")
    if NCT < 16:
        a(f"s_cmp_ge_u32 s17, {NCT}")
        a(f"s_cbranch_scc1 {end}")
    srd(a, 8, 512 * RS)
    srd(a, 12, WSB)
    lane_decode(a, v)
    a(f"v_lshlrev_b32 v{v['vx']}, 4, v{v['lane']}")
    a("s_mov_b32 s22, 0xaaab")
    a(f"s_mov_b32 s23, {RS - 192}")
    for i in range(3):
        t0, t1 = v['t0'], v['t1']
        a(f"v_add_u32 v{t0}, {64*i}, v{v['lane']}")
        a(f"v_mul_u32_u24 v{t1}, s22, v{t0}")
        a(f"v_lshrrev_b32 v{t1}, 19, v{t1}")
        a(f"v_mad_u32_u24 v{v['w%d' % i]}, v{t1}, s23, v{v['vx']}")
    a("s_lshl_b32 s24, s16, 2")
    a("s_add_u32 s24, s24, s18")
    a("s_lshl_b32 s19, s24, 15")
    a(f"s_mul_i32 s20, s18, {16*RS}")
    a("s_mul_i32 s5, s17, 192")
    a("s_add_u32 s20, s20, s5")
    a("s_mul_i32 s21, s18, 3072")
    a("s_lshr_b32 s5, s18, 1")
    a("s_lshl_b32 s5, s5, 13")
    a(f"s_add_u32 s25, s5, {hex(CSQ if qkv else CS1)}")
    a("s_mul_i32 s5, s17, 384")
    a("s_add_u32 s25, s25, s5")
    a("s_and_b32 s5, s18, 1")
    a("s_lshl_b32 s5, s5, 8")
    a("s_add_u32 s25, s25, s5")
    a("s_lshl_b32 s5, s18, 8")
    a(f"s_add_u32 s5, s5, {CSB}")
    a("s_mov_b32 m0, s5")
    a(f"v_lshlrev_b32 v{v['t2']}, 2, v{v['lane']}")
    a("s_waitcnt lgkmcnt(0)")
    vm = VmTracker()
    a(f"buffer_load_dword v{v['t2']}, s[12:15], s25 offen lds"); vm.issue(("c", 0))
    def chunk_ops(c):
        ops = []
        def mk_w(i):
            def f():
                if i == 0:
                    a("s_mov_b32 m0, s21")
                    a("s_add_u32 s21, s21, 12288")
                a(f"buffer_load_dwordx4 v{v['w%d' % i]}, s[8:11], s20 offen offset:{1024*i} lds"); vm.issue(("c", c))
                if i == 2:
                    a(f"s_add_u32 s20, s20, {64*RS}")
            return f
        def mk_x(j):
            def f():
                ks = 4 * c + j
                a(f"buffer_load_dwordx4 {vr(xf+4*ks,4)}, v{v['vx']}, s[12:15], s19 offen offset:{1024*j}"); vm.issue(("c", c))
                if j == 3:
                    a("s_add_u32 s19, s19, 4096")
            return f
        for i in range(3): ops.append(mk_w(i))
        for j in range(4): ops.append(mk_x(j))
        return ops
    for c in range(P):
        for f in chunk_ops(c): f()
    t0, t1, t2 = v['t0'], v['t1'], v['t2']
    a(f"v_bfe_u32 v{t0}, v0, 2, 2")
    a(f"v_lshl_add_u32 v{t0}, v{v['h']}, 2, v{t0}")
    a(f"v_mul_u32_u24 v{t0}, 192, v{t0}")
    a(f"v_bfe_u32 v{t1}, v0, 4, 1")
    a(f"v_lshl_add_u32 v{t0}, v{t1}, 5, v{t0}")
    a(f"v_and_b32 v{t1}, 3, v0")
    a(f"v_lshl_add_u32 v{v['ra']}, v{t1}, 3, v{t0}")
    a(f"v_add_u32 v{v['rb']}, 49152, v{v['ra']}")
    a(f"v_lshlrev_b32 v{v['vc']}, 4, v{v['h']}")
    a(f"v_add_u32 v{v['vc']}, {CSB}, v{v['vc']}")
    a(f"v_lshlrev_b32 v{v['vst']}, 7, v{v['tok']}")
    a(f"v_lshl_add_u32 v{v['vst']}, v{v['h']}, 6, v{v['vst']}")
    a("s_lshl_b32 s26, s24, 12")
    a(f"s_add_u32 s26, s26, {hex(ST)}")
    a(f"v_lshlrev_b32 v{v['vpv']}, 5, v{v['tok']}")
    a(f"v_lshl_add_u32 v{v['vpv']}, v{v['h']}, 4, v{v['vpv']}")
    def stat_ops():
        ops = []
        for q in range(4):
            def f(q=q):
                a(f"buffer_load_dwordx4 {vr(st+4*q,4)}, v{v['vst']}, s[12:15], s26 offen offset:{16*q}"); vm.issue(("s", 0))
            ops.append(f)
        return ops
    pend = []
    for c in range(P, 8): pend.append(chunk_ops(c))
    pend.append(stat_ops())
    def wread(ks, ft, u):
        base = v['ra'] if ks < 16 else v['rb']
        off = (ks % 16) * 3072 + u * 1536 + ft * 64
        d = wf + (ks % 3) * 12 + ft * 4 + u * 2
        a(f"ds_read_b64_tr_b16 {vr(d,2)}, v{base} offset:{off}")
    def sync(c):
        a(f"s_waitcnt vmcnt({vm.need(lambda t: t[0]=='c' and t[1] <= c)})")
        a("s_barrier")
    sync(0)
    for ks in (0, 1):
        for ft in range(3):
            for u in range(2): wread(ks, ft, u)
    cur = []
    for ks in range(32):
        c = ks // 4
        if ks % 4 == 0:
            assert not cur
            cur = pend.pop(0) if pend else []
        if ks % 4 == 2 and c + 1 < 8:
            sync(c + 1)
        a(f"s_waitcnt lgkmcnt({6 if ks < 31 else 0})")
        for ft in range(3):
            cin = "0" if ks == 0 else vr(acc + 16 * ft, 16)
            a(f"{MFMA} {vr(acc+16*ft,16)}, {vr(wf+(ks%3)*12+ft*4,4)}, {vr(xf+4*ks,4)}, {cin}")
            if ks + 2 < 32:
                for u in range(2): wread(ks + 2, ft, u)
            if cur and (ft < 2 or ks % 4 == 3):
                cur.pop(0)()
        if ks % 4 == 3:
            while cur: cur.pop(0)()
    while pend:
        for f in pend.pop(0): f()
    cs = xf
    bi = xf + 48
    for i in range(3):
        for q in range(4):
            a(f"ds_read_b128 {vr(cs+16*i+4*q,4)}, v{v['vc']} offset:{i*128+q*32}")
    a("s_waitcnt vmcnt(0)")
    row_stats(a, st, negm, rstd, t0, t1)
    pk = xf + 96
    if qkv:
        a("s_mul_i32 s27, s17, 3")
        a("s_lshl_b32 s28, s24, 10")
        a(f"s_add_u32 s28, s28, {hex(QF)}")
        a("s_waitcnt lgkmcnt(0)")
        for i in range(3):
            a(f"s_add_u32 s29, s27, {i}")
            a("s_lshl_b32 s30, s29, 17")
            a("s_add_u32 s30, s30, s28")
            a("s_add_u32 s31, s30, 65536")
            a("s_cmp_lt_u32 s29, 16")
            a(f"s_cselect_b32 s32, {f2u(0.25*LOG2E)}, 1.0")
            a("s_cmp_lt_u32 s29, 32")
            a("s_cselect_b64 vcc, -1, 0")
            a(f"v_mul_f32 v{sc}, s32, v{rstd}")
            a(f"v_cndmask_b32 v{v['vpk']}, v{v['vpv']}, v{v['vx']}, vcc")
            for p in range(8):
                r = acc + 16 * i + 2 * p
                a(f"v_pk_fma_f32 {vr(r,2)}, {vr(cs+16*i+2*p,2)}, {vr(negm,2)}, {vr(r,2)} op_sel_hi:[1,0,1]")
            for p in range(8):
                r = acc + 16 * i + 2 * p
                a(f"v_pk_mul_f32 {vr(r,2)}, {vr(r,2)}, {vr(sc,2)} op_sel_hi:[1,0]")
            for p in range(8):
                r = acc + 16 * i + 2 * p
                a(f"v_cvt_pk_bf16_f32 v{pk+8*i+p}, v{r}, v{r+1}")
            a(f"buffer_store_dwordx4 {vr(pk+8*i,4)}, v{v['vpk']}, s[12:15], s30 offen")
            a(f"buffer_store_dwordx4 {vr(pk+8*i+4,4)}, v{v['vpk']}, s[12:15], s31 offen")
    else:
        a("s_waitcnt lgkmcnt(0)")
        for i in range(3):
            for q in range(4):
                a(f"ds_read_b128 {vr(bi+16*i+4*q,4)}, v{v['vc']} offset:{512+i*128+q*32}")
        a(f"v_mul_f32 v{sc}, {f2u(LOG2E)}, v{rstd}")
        a("s_mov_b32 s40, 1.0")
        a("s_mov_b32 s41, 1.0")
        a("s_mov_b32 s42, -2.0")
        a("s_mov_b32 s43, -2.0")
        a(f"s_mul_i32 s28, s24, {86*1024}")
        a(f"s_mul_i32 s29, s17, {6*1024}")
        a("s_add_u32 s28, s28, s29")
        a(f"s_add_u32 s28, s28, {hex(AF)}")
        u = wf
        for i in range(3):
            A = acc + 16 * i
            for p in range(8):
                a(f"v_pk_fma_f32 {vr(A+2*p,2)}, {vr(cs+16*i+2*p,2)}, {vr(negm,2)}, {vr(A+2*p,2)} op_sel_hi:[1,0,1]")
            if i == 0:
                a("s_waitcnt lgkmcnt(0)")
            for p in range(8):
                a(f"v_pk_fma_f32 {vr(A+2*p,2)}, {vr(A+2*p,2)}, {vr(sc,2)}, {vr(bi+16*i+2*p,2)} op_sel_hi:[1,0,1]")
            for j in range(16):
                a(f"v_exp_f32 v{u+j}, v{A+j}")
            for p in range(8):
                a(f"v_pk_add_f32 {vr(u+2*p,2)}, {vr(u+2*p,2)}, s[40:41]")
            for p in range(8):
                a(f"v_pk_fma_f32 {vr(u+2*p,2)}, {vr(u+2*p,2)}, {vr(u+2*p,2)}, s[40:41]")
            for j in range(16):
                a(f"v_rcp_f32 v{u+j}, v{u+j}")
            for p in range(8):
                a(f"v_pk_mul_f32 {vr(u+2*p,2)}, {vr(u+2*p,2)}, {vr(A+2*p,2)}")
            for p in range(8):
                a(f"v_pk_fma_f32 {vr(u+2*p,2)}, {vr(u+2*p,2)}, s[42:43], {vr(A+2*p,2)}")
            for p in range(8):
                a(f"v_cvt_pk_bf16_f32 v{pk+8*i+p}, v{u+2*p}, v{u+2*p+1}")
            a(f"buffer_store_dwordx4 {vr(pk+8*i,4)}, v{v['vx']}, s[12:15], s28 offen")
            a(f"buffer_store_dwordx4 {vr(pk+8*i+4,4)}, v{v['vx']}, s[12:15], s28 offen offset:1024")
            if i == 0:
                a("s_cmp_eq_u32 s17, 14")
                a(f"s_cbranch_scc1 {end}")
            if i < 2:
                a("s_add_u32 s28, s28, 2048")
    a.label(end)
    a("s_endpgm")
    return (name, R.hi, 48, 256, 256, CSB + 1024)

def gen_gemmB(a, name, mode, P):
    wo = mode == "wo"
    NKS = 32 if wo else 86
    HK = NKS // 2
    NCH = (HK + 3) // 4
    P = min(P, NCH)
    RING = min(NCH, P + 2)
    XR = min(NCH, P + 1)
    KA = 16 if wo else 48
    XB = OF if wo else AF
    XCH = RING * 16384
    NW = (RING + 3) // 4
    R = Regs(1, 256, "v")
    v = {k: R.alloc() for k in ("lane", "tok", "h", "t0", "t1", "t2", "vx", "w0", "w1", "w2", "w3", "vxw", "vxr", "vst", "vo")}
    rb = [[R.alloc() for _ in range(NW)] for _ in range(2)]
    sq = R.alloc(4, 2)
    acc = R.alloc(32, 4)
    xf = R.alloc(16 * XR, 4)
    wf = R.alloc(24, 4)
    res = R.alloc(8, 4)
    tmp = R.alloc(16, 4)
    names = [name] if wo else [name, name.replace("_kernel", "o_kernel")]
    end = name + "_end"
    if not wo:
        kernel_header(a, names[1])
        a("s_mov_b32 s33, 1")
        a(f"s_branch {name}_body")
    kernel_header(a, name)
    a("s_mov_b32 s33, 0")
    a.label(name + "_body")
    a("s_cmp_ge_u32 s2, 256")
    a(f"s_cbranch_scc1 {end}")
    a(f"s_load_dwordx2 s[8:9], s[0:1], {KA}")
    a("s_load_dwordx2 s[12:13], s[0:1], 72")
    a("s_load_dwordx2 s[36:37], s[0:1], 56")
    a("s_and_b32 s3, s2, 7")
    a("s_lshr_b32 s4, s2, 3")
    a("s_lshr_b32 s16, s3, 1")
    a("s_lshl_b32 s16, s16, 3")
    a("s_and_b32 s5, s4, 7")
    a("s_add_u32 s16, s16, s5")
    a("s_and_b32 s17, s3, 1")
    a("s_lshl_b32 s17, s17, 2")
    a("s_lshr_b32 s5, s4, 3")
    a("s_add_u32 s17, s17, s5")
    srd(a, 8, NKS * 16 * 1024)
    srd(a, 12, WSB)
    srd(a, 36, 0x200000)
    lane_decode(a, v)
    t0, t1, t2 = v['t0'], v['t1'], v['t2']
    a(f"v_lshlrev_b32 v{v['vx']}, 4, v{v['lane']}")
    a(f"v_lshrrev_b32 v{t0}, 3, v{v['lane']}")
    a(f"v_bfe_u32 v{t1}, v0, 4, 1")
    a(f"v_lshlrev_b32 v{t1}, 2, v{t1}")
    a(f"v_and_b32 v{t2}, 7, v0")
    a(f"v_xor_b32 v{t1}, v{t1}, v{t2}")
    a(f"v_lshlrev_b32 v{t1}, 4, v{t1}")
    a(f"v_lshl_add_u32 v{v['w0']}, v{t0}, 10, v{t1}")
    for i in range(1, 4):
        a(f"v_add_u32 v{v['w%d' % i]}, {7168*i}, v{v['w0']}")
    a("s_and_b32 s22, s18, 1")
    a("s_lshr_b32 s23, s18, 1")
    a("s_lshl_b32 s24, s16, 1")
    a("s_add_u32 s24, s24, s22")
    a(f"s_mul_i32 s19, s24, {NKS*1024}")
    a(f"s_mul_i32 s5, s23, {HK*1024}")
    a("s_add_u32 s19, s19, s5")
    a(f"s_add_u32 s19, s19, {hex(XB)}")
    a(f"s_mul_i32 s20, s23, {HK*16*1024}")
    a("s_lshl_b32 s5, s22, 15")
    a("s_add_u32 s20, s20, s5")
    a("s_lshl_b32 s5, s17, 7")
    a("s_add_u32 s20, s20, s5")
    a("s_lshl_b32 s21, s23, 13")
    a("s_lshl_b32 s5, s22, 12")
    a("s_add_u32 s21, s21, s5")
    a("s_waitcnt lgkmcnt(0)")
    vm = VmTracker()
    def nks(c): return min(4, HK - 4 * c)
    def chunk_ops(c):
        ops = []
        def mk_w(i):
            def f():
                if i == 0:
                    a(f"s_add_u32 m0, s21, {(c % RING) * 16384}")
                    a("s_nop 0")
                a(f"buffer_load_dwordx4 v{v['w%d' % i]}, s[8:11], s20 offen offset:{1024*i} lds"); vm.issue(("c", c))
                if i == 3:
                    a("s_add_u32 s20, s20, 65536")
            return f
        def mk_x(j):
            def f():
                a(f"buffer_load_dwordx4 {vr(xf+16*(c%XR)+4*j,4)}, v{v['vx']}, s[12:15], s19 offen offset:{1024*j}"); vm.issue(("c", c))
                if j == 3:
                    a("s_add_u32 s19, s19, 4096")
            return f
        for i in range(4): ops.append(mk_w(i))
        for j in range(nks(c)): ops.append(mk_x(j))
        return ops
    for c in range(P):
        for f in chunk_ops(c): f()
    a(f"v_bfe_u32 v{t0}, v0, 2, 2")
    a(f"v_lshl_add_u32 v{t1}, v{v['h']}, {3 if wo else 2}, v{t0}")
    a(f"v_lshlrev_b32 v{t1}, 7, v{t1}")
    a(f"v_bfe_u32 v{t2}, v0, 4, 1")
    a(f"v_lshl_add_u32 v{t1}, v{t2}, 5, v{t1}")
    a(f"v_and_b32 v{t2}, 3, v0")
    a(f"v_lshl_add_u32 v{t1}, v{t2}, 3, v{t1}")
    a("s_lshl_b32 s5, s23, 13")
    a(f"v_add_u32 v{t1}, s5, v{t1}")
    a(f"v_lshrrev_b32 v{t0}, 1, v{t0}")
    a(f"v_xor_b32 v{t0}, s23, v{t0}")
    a(f"v_lshl_add_u32 v{rb[0][0]}, v{t0}, 6, v{t1}")
    a(f"v_xor_b32 v{rb[1][0]}, 64, v{rb[0][0]}")
    for i in range(2):
        for w_ in range(1, NW):
            a(f"v_add_u32 v{rb[i][w_]}, {65536*w_}, v{rb[i][0]}")
    a("s_lshl_b32 s5, s18, 12")
    a(f"s_add_u32 s5, s5, {XCH}")
    a(f"v_add_u32 v{v['vxw']}, s5, v{v['vx']}")
    a(f"v_xor_b32 v{v['vxr']}, 8192, v{v['vxw']}")
    a("s_lshl_b32 s25, s17, 1")
    a("s_add_u32 s25, s25, s23")
    a("s_lshl_b32 s26, s24, 15")
    a("s_lshl_b32 s5, s25, 11")
    a("s_add_u32 s26, s26, s5")
    a(f"v_lshlrev_b32 v{v['vst']}, 7, v{v['tok']}")
    a(f"v_lshl_add_u32 v{v['vst']}, v{v['h']}, 2, v{v['vst']}")
    a("s_lshl_b32 s27, s24, 12")
    a("s_lshl_b32 s5, s25, 3")
    a("s_add_u32 s27, s27, s5")
    a(f"s_add_u32 s27, s27, {hex(ST)}")
    a(f"v_lshlrev_b32 v{v['vo']}, 10, v{v['tok']}")
    a(f"v_lshl_add_u32 v{v['vo']}, v{v['h']}, 4, v{v['vo']}")
    a("s_lshl_b32 s28, s24, 15")
    a("s_lshl_b32 s5, s25, 6")
    a("s_add_u32 s28, s28, s5")
    def res_ops():
        return [lambda q=q: (a(f"buffer_load_dwordx4 {vr(res+4*q,4)}, v{v['vx']}, s[12:15], s26 offen offset:{1024*q}"), vm.issue(("r", 0))) for q in range(2)]
    pend = [chunk_ops(c) for c in range(P, NCH)] + [res_ops()]
    ustep = 512 if wo else 1024
    def wread(ks, i, u):
        slot = (ks // 4) % RING
        off = (slot % 4) * 16384 + (ks % 4) * 2048 + u * ustep
        d = wf + (ks % 3) * 8 + i * 4 + u * 2
        a(f"ds_read_b64_tr_b16 {vr(d,2)}, v{rb[i][slot//4]} offset:{off}")
    def sync(c):
        a(f"s_waitcnt vmcnt({vm.need(lambda t: t[0]=='c' and t[1] <= c)})")
        a("s_barrier")
    sync(0)
    for ks in (0, 1):
        for i in range(2):
            for u in range(2): wread(ks, i, u)
    cur = []
    for ks in range(HK):
        c = ks // 4
        if ks % 4 == 0:
            assert not cur
            cur = pend.pop(0) if pend else []
        if ks % 4 == 2 and c + 1 < NCH:
            sync(c + 1)
        a(f"s_waitcnt lgkmcnt({4 if ks < HK-1 else 0})")
        for i in range(2):
            cin = "0" if ks == 0 else vr(acc + 16 * i, 16)
            a(f"{MFMA} {vr(acc+16*i,16)}, {vr(wf+(ks%3)*8+i*4,4)}, {vr(xf+16*(c%XR)+4*(ks%4),4)}, {cin}")
            if ks + 2 < HK:
                for u in range(2): wread(ks + 2, i, u)
            if cur:
                cur.pop(0)()
        if ks % 4 == 3 or ks == HK - 1:
            while cur: cur.pop(0)()
    while pend:
        for f in pend.pop(0): f()
    a("s_mov_b32 s40, %s" % ("1.0" if wo else f2u(LN2)))
    a("s_mov_b32 s41, s40")
    a("s_mov_b32 s42, 0xffff0000")
    a("s_nop 9")
    for q in range(4):
        a(f"ds_write_b128 v{v['vxw']}, {vr(acc+16+4*q,4)} offset:{1024*q}")
    a("s_waitcnt lgkmcnt(0)")
    a("s_barrier")
    for q in range(4):
        a(f"ds_read_b128 {vr(acc+16+4*q,4)}, v{v['vxr']} offset:{1024*q}")
    a("s_waitcnt vmcnt(0)")
    for p in range(8):
        a(f"v_lshlrev_b32 v{tmp+2*p}, 16, v{res+p}")
        a(f"v_and_b32 v{tmp+2*p+1}, s42, v{res+p}")
    a("s_waitcnt lgkmcnt(0)")
    for p in range(8):
        a(f"v_pk_add_f32 {vr(acc+2*p,2)}, {vr(acc+2*p,2)}, {vr(acc+16+2*p,2)}")
    for p in range(8):
        a(f"v_pk_fma_f32 {vr(acc+2*p,2)}, {vr(acc+2*p,2)}, s[40:41], {vr(tmp+2*p,2)}")
    for p in range(8):
        a(f"v_cvt_pk_bf16_f32 v{res+p}, v{acc+2*p}, v{acc+2*p+1}")
    if not wo:
        a("s_cmp_eq_u32 s33, 1")
        a(f"s_cbranch_scc1 {name}_final")
    a(f"buffer_store_dwordx4 {vr(res,4)}, v{v['vx']}, s[12:15], s26 offen")
    a(f"buffer_store_dwordx4 {vr(res+4,4)}, v{v['vx']}, s[12:15], s26 offen offset:1024")
    a(f"v_pk_add_f32 {vr(sq,2)}, {vr(acc,2)}, {vr(acc+2,2)}")
    a(f"v_pk_mul_f32 {vr(sq+2,2)}, {vr(acc,2)}, {vr(acc,2)}")
    a(f"v_pk_fma_f32 {vr(sq+2,2)}, {vr(acc+2,2)}, {vr(acc+2,2)}, {vr(sq+2,2)}")
    for p in range(2, 8):
        a(f"v_pk_add_f32 {vr(sq,2)}, {vr(sq,2)}, {vr(acc+2*p,2)}")
        a(f"v_pk_fma_f32 {vr(sq+2,2)}, {vr(acc+2*p,2)}, {vr(acc+2*p,2)}, {vr(sq+2,2)}")
    a(f"v_add_f32 v{sq}, v{sq}, v{sq+1}")
    a(f"v_add_f32 v{sq+2}, v{sq+2}, v{sq+3}")
    a("s_nop 1")
    a(f"v_permlane32_swap_b32 v{sq}, v{sq+2}")
    a("s_nop 1")
    a(f"v_add_f32 v{sq}, v{sq}, v{sq+2}")
    a(f"buffer_store_dword v{sq}, v{v['vst']}, s[12:15], s27 offen")
    a.label(end)
    a("s_endpgm")
    if not wo:
        a.label(name + "_final")
        a("s_nop 0")
        for s_ in range(2):
            a(f"v_permlane32_swap_b32 v{res+4*s_}, v{res+4*s_+2}")
            a(f"v_permlane32_swap_b32 v{res+4*s_+1}, v{res+4*s_+3}")
        a("s_nop 1")
        a(f"buffer_store_dwordx4 {vr(res,4)}, v{v['vo']}, s[36:39], s28 offen")
        a(f"buffer_store_dwordx4 {vr(res+4,4)}, v{v['vo']}, s[36:39], s28 offen offset:32")
        a("s_endpgm")
    return [(n, R.hi, 48, 256, 256, XCH + 16384) for n in names]

def gen_attn(a):
    name = "attn_kernel"
    T = 8
    VB = 65536; ONES = 131072; ONES_SZ = (T + 2) * 1024
    R = Regs(1, 128, "v")
    v = {k: R.alloc() for k in ("lane", "tok", "h", "t0", "t1", "t2", "vx", "vk", "vv", "vvs", "vk0", "vv0", "m")}
    q = R.alloc(4, 4)
    S = [R.alloc(16, 4), R.alloc(16, 4)]
    C = R.alloc(16, 4)
    O = R.alloc(16, 4)
    Pp = R.alloc(8, 4)
    K = [R.alloc(4, 4), R.alloc(4, 4)]
    V = [R.alloc(8, 4), R.alloc(8, 4)]
    kernel_header(a, name)
    a("s_cmp_ge_u32 s2, 256")
    a("s_cbranch_scc1 attn_end")
    a("s_load_dwordx2 s[12:13], s[0:1], 72")
    a("s_and_b32 s3, s2, 7")
    a("s_lshl_b32 s16, s3, 2")
    a("s_lshr_b32 s4, s2, 3")
    a("s_and_b32 s5, s4, 3")
    a("s_add_u32 s16, s16, s5")
    a("s_lshr_b32 s17, s4, 2")
    srd(a, 12, WSB)
    lane_decode(a, v)
    t0, t1, t2 = v['t0'], v['t1'], v['t2']
    a(f"v_lshlrev_b32 v{v['vx']}, 4, v{v['lane']}")
    a("s_lshl_b32 s24, s17, 3")
    a("s_add_u32 s24, s24, s18")
    a("s_lshl_b32 s19, s16, 16")
    a("s_lshl_b32 s5, s24, 10")
    a("s_add_u32 s20, s19, s5")
    a(f"s_add_u32 s20, s20, {hex(QF)}")
    a("s_lshl_b32 s21, s18, 10")
    a("s_add_u32 s22, s19, s21")
    a(f"s_add_u32 s23, s22, {hex(VF)}")
    a(f"s_add_u32 s22, s22, {hex(KF)}")
    a("s_waitcnt lgkmcnt(0)")
    a(f"buffer_load_dwordx4 {vr(q,4)}, v{v['vx']}, s[12:15], s20 offen")
    for s_ in range(8):
        a(f"s_add_u32 m0, s21, {s_*8192}")
        a("s_nop 0")
        a(f"buffer_load_dwordx4 v{v['vx']}, s[12:15], s22 offen lds")
        a(f"s_add_u32 m0, s21, {VB + s_*8192}")
        a("s_add_u32 s22, s22, 8192")
        a(f"buffer_load_dwordx4 v{v['vx']}, s[12:15], s23 offen lds")
        a("s_add_u32 s23, s23, 8192")
    for j in range(4):
        a(f"v_mov_b32 v{S[0]+j}, 0x3f803f80")
    a(f"v_lshlrev_b32 v{t0}, 4, v0")
    a(f"v_add_u32 v{t0}, {ONES}, v{t0}")
    a(f"ds_write_b128 v{t0}, {vr(S[0],4)}")
    a(f"ds_write_b128 v{t0}, {vr(S[0],4)} offset:8192")
    a(f"v_bfe_u32 v{t0}, v0, 2, 2")
    a(f"v_lshl_add_u32 v{t0}, v{v['h']}, 2, v{t0}")
    a(f"v_lshlrev_b32 v{t0}, 5, v{t0}")
    a(f"v_and_b32 v{t1}, 3, v0")
    a(f"v_lshl_add_u32 v{t0}, v{t1}, 3, v{t0}")
    a(f"v_bfe_u32 v{t1}, v0, 4, 1")
    a(f"v_cmp_eq_u32 vcc, 1, v{t1}")
    a(f"v_xor_b32 v{t2}, 128, v{t0}")
    a(f"v_add_u32 v{t2}, {ONES}, v{t2}")
    a(f"v_add_u32 v{t0}, {VB}, v{t0}")
    a(f"v_cndmask_b32 v{v['vv0']}, v{t0}, v{t2}, vcc")
    a(f"v_mov_b32 v{t0}, {T*1024}")
    a(f"v_cndmask_b32 v{v['vvs']}, v{t0}, 0, vcc")
    for j in range(16):
        a(f"v_mov_b32 v{C+j}, 0")
    a("s_mov_b32 s30, 0")
    a("s_waitcnt vmcnt(12) lgkmcnt(0)")
    a("s_barrier")
    def kread(t, p):
        a(f"ds_read_b128 {vr(K[p],4)}, v{v['vk']} offset:{t*1024}")
    def vread(t, p, s_, u):
        a(f"ds_read_b64_tr_b16 {vr(V[p]+4*s_+2*u,2)}, v{v['vv']} offset:{t*1024+s_*512+u*256}")
    a.label("attn_pass")
    a(f"v_mov_b32 v{v['vk']}, v{v['vx']}")
    a(f"v_mov_b32 v{v['vv']}, v{v['vv0']}")
    for j in range(16):
        a(f"v_mov_b32 v{O+j}, 0")
    kread(0, 0)
    for s_ in range(2):
        for u in range(2): vread(0, 0, s_, u)
    kread(1, 1)
    for s_ in range(2):
        for u in range(2): vread(1, 1, s_, u)
    a("s_waitcnt lgkmcnt(9)")
    a(f"{MFMA} {vr(S[0],16)}, {vr(K[0],4)}, {vr(q,4)}, {vr(C,16)}")
    a("s_mov_b32 s31, 0")
    a("s_nop 9")
    a.raw(".p2align 6")
    a.label("attn_loop")
    for t in range(T):
        p = t & 1
        s = S[p]
        e = lambda j: a(f"v_exp_f32 v{s+j}, v{s+j}")
        c = lambda j: a(f"v_cvt_pk_bf16_f32 v{Pp+j//2}, v{s+j}, v{s+j+1}")
        a("s_waitcnt lgkmcnt(4)")
        a(f"{MFMA} {vr(S[1-p],16)}, {vr(K[1-p],4)}, {vr(q,4)}, {vr(C,16)}")
        kread(t + 2, p)
        e(0); e(1); e(2); e(3); c(0); e(4); e(5); c(2); e(6); e(7); c(4); e(8); e(9); c(6); e(10); e(11)
        a(f"{MFMA} {vr(O,16)}, {vr(V[p],4)}, {vr(Pp,4)}, {vr(O,16)}")
        c(8); e(12); e(13); c(10); e(14); e(15); c(12); c(14)
        vread(t + 2, p, 0, 0); vread(t + 2, p, 0, 1)
        a(f"{MFMA} {vr(O,16)}, {vr(V[p]+4,4)}, {vr(Pp+4,4)}, {vr(O,16)}")
        vread(t + 2, p, 1, 0); vread(t + 2, p, 1, 1)
    a(f"v_add_u32 v{v['vk']}, {T*1024}, v{v['vk']}")
    a(f"v_add_u32 v{v['vv']}, v{v['vvs']}, v{v['vv']}")
    a("s_or_b32 s5, s30, s31")
    a("s_cbranch_scc1 attn_nosync")
    a("s_waitcnt vmcnt(0)")
    a("s_barrier")
    a.label("attn_nosync")
    a("s_add_u32 s31, s31, 1")
    a(f"s_cmp_lt_u32 s31, {64//T}")
    a("s_cbranch_scc1 attn_loop")
    a("s_waitcnt lgkmcnt(0)")
    a("s_nop 7")
    a(f"v_rcp_f32 v{t0}, v{O+8}")
    a(f"v_max3_f32 v{t1}, abs(v{O}), abs(v{O+1}), abs(v{O+2})")
    a(f"v_max3_f32 v{t2}, abs(v{O+3}), abs(v{O+4}), abs(v{O+5})")
    a(f"v_max3_f32 v{t1}, abs(v{O+6}), abs(v{O+7}), v{t1}")
    a(f"v_max_f32 v{t1}, v{t1}, v{t2}")
    a(f"s_mov_b32 s5, {f2u(2.0**-24)}")
    a(f"s_mov_b32 s6, {f2u(2.0**40)}")
    a(f"s_mov_b32 s7, {f2u(2.0**126)}")
    a(f"v_cmp_nle_f32 s[26:27], s5, v{O+8}")
    a(f"v_cmp_nge_f32 s[28:29], s6, v{O+8}")
    a(f"v_cmp_nge_f32 vcc, s7, v{t1}")
    for j in range(8):
        a(f"v_mul_f32 v{O+j}, v{t0}, v{O+j}")
    a("s_or_b64 s[26:27], s[26:27], s[28:29]")
    a("s_or_b64 s[26:27], s[26:27], vcc")
    a("s_cselect_b32 s5, 1, 0")
    a("s_cmp_gt_u32 s5, s30")
    a("s_cbranch_scc1 attn_slow")
    for j in range(4):
        a(f"v_cvt_pk_bf16_f32 v{Pp+j}, v{O+2*j}, v{O+2*j+1}")
    a("s_lshl_b32 s5, s24, 15")
    a("s_lshl_b32 s6, s16, 10")
    a("s_add_u32 s5, s5, s6")
    a(f"s_add_u32 s5, s5, {hex(OF)}")
    a(f"buffer_store_dwordx4 {vr(Pp,4)}, v{v['vx']}, s[12:15], s5 offen")
    a.label("attn_end")
    a("s_endpgm")
    a.label("attn_slow")
    a("s_mov_b32 s30, 1")
    a(f"v_mov_b32 v{v['vk']}, v{v['vx']}")
    a(f"v_mov_b32 v{v['m']}, 0xff800000")
    a("s_mov_b32 s31, 0")
    a.label("attn_maxloop")
    kread(0, 0)
    a(f"v_add_u32 v{v['vk']}, 1024, v{v['vk']}")
    a("s_waitcnt lgkmcnt(0)")
    a(f"{MFMA} {vr(S[0],16)}, {vr(K[0],4)}, {vr(q,4)}, 0")
    a("s_nop 15")
    for j in range(8):
        a(f"v_max3_f32 v{v['m']}, v{S[0]+2*j}, v{S[0]+2*j+1}, v{v['m']}")
    a("s_add_u32 s31, s31, 1")
    a("s_cmp_lt_u32 s31, 64")
    a("s_cbranch_scc1 attn_maxloop")
    a(f"v_mov_b32 v{t0}, v{v['m']}")
    a("s_nop 1")
    a(f"v_permlane32_swap_b32 v{t0}, v{v['m']}")
    a("s_nop 1")
    a(f"v_max_f32 v{t0}, v{t0}, v{v['m']}")
    for j in range(16):
        a(f"v_sub_f32 v{C+j}, 0, v{t0}")
    a("s_branch attn_pass")
    return (name, R.hi, 48, 256, 512, ONES + 16384)

def main(out, extra_dummy=0, upto=None):
    a = Asm()
    ks = {}
    def reg(k): ks[k[0]] = k
    reg(gen_prep(a))
    reg(gen_gemmA(a, "qkv_kernel", "qkv"))
    reg(gen_attn(a))
    for k in gen_gemmB(a, "wo_kernel", "wo", 4): reg(k)
    reg(gen_gemmA(a, "ffn1_kernel", "ffn1"))
    for k in gen_gemmB(a, "ffn2_kernel", "ffn2", 4): reg(k)
    order = ["prep_kernel", "qkv_kernel", "attn_kernel", "wo_kernel", "ffn1_kernel", "ffn2_kernel",
             "qkv_kernel", "attn_kernel", "wo_kernel", "ffn1_kernel", "ffn2o_kernel"]
    if extra_dummy:
        kernel_header(a, "dummy_kernel")
        a("s_endpgm")
        reg(("dummy_kernel", 8, 16, 256, 256, 0))
        order = order + ["dummy_kernel"] * extra_dummy
    hdr = ["; generated by gen/gen1.py"]
    for n in order:
        _, vg, sg, grid, block, lds = ks[n]
        hdr.append(f"; @launch kernel={n} grid=({grid},1,1) block=({block},1,1) lds={lds}")
    txt = "\n".join(hdr) + '\n.amdgcn_target "amdgcn-amd-amdhsa--gfx950"\n.text\n' + a.text()
    txt += '.section .rodata,"a"\n'
    for n, (_, vg, sg, grid, block, lds) in ks.items():
        txt += kernel_desc(n, vg, sg)
    open(out, "w").write(txt)
    for n, k in ks.items(): print(k)

if __name__ == "__main__":
    out = sys.argv[1] if len(sys.argv) > 1 else f"cdna_kernels/{NAME}.s"
    main(out, int(sys.argv[2]) if len(sys.argv) > 2 else 0)
```
